```python
import torch

def _softmax(x, axis=-1):
    return torch.softmax(x, dim=axis)
def _gelu(x):
    return torch.nn.functional.gelu(x, approximate="tanh")
def _silu(x):
    return torch.nn.functional.silu(x)
def _sigmoid(x):
    return torch.sigmoid(x)
def _layernorm(x, axis=-1, eps=1e-5):
    m = x.mean(dim=axis, keepdim=True)
    v = x.var(dim=axis, keepdim=True, unbiased=False)
    return (x - m) / torch.sqrt(v + eps)
def _scatter_add(tgt, idx, src, axis=0):
    return tgt.clone().index_add_(axis, idx, src)
def _segment_sum(src, seg, n):
    out = torch.zeros((n,) + src.shape[1:], dtype=src.dtype)
    return out.index_add_(0, seg, src)
def _pad(x, pw):
    flat = tuple(v for pair in reversed(pw) for v in pair)
    return torch.nn.functional.pad(x, flat)

kernel_name = 'parallel_sum__spectral_gfnet__glu_gated_reglu__prompt'

def setup_inputs():

    _w = (lambda a: (lambda t: t.to(torch.bfloat16) if t.is_floating_point() else t)(torch.as_tensor(a)))
    def _A_setup():
        B, S, D = 1, 2048, 512
        Df = D // 2 + 1
        return {
            "x": _w((lambda *s: torch.randn(*s, dtype=torch.bfloat16) * 0.05)(B, S, D)),
            "w_r": _w((lambda *s: torch.randn(*s, dtype=torch.bfloat16) * 0.4)(S, Df) * 0.02),
            "w_i": _w((lambda *s: torch.randn(*s, dtype=torch.bfloat16) * 0.4)(S, Df) * 0.02),
        }
    _A_in = _A_setup()

    def _B_setup():
        B, S, D, F = 1, 2048, 512, 1792
        return {
            "x": _w((lambda *s: torch.randn(*s, dtype=torch.bfloat16) * 0.05)(B, S, D)),
            "W_gate": _w((lambda *s: torch.randn(*s, dtype=torch.bfloat16) * 0.2)(D, F) * (2.0 / D) ** 0.5),
            "W_up": _w((lambda *s: torch.randn(*s, dtype=torch.bfloat16) * 0.2)(D, F) * (2.0 / D) ** 0.5),
            "W_down": _w((lambda *s: torch.randn(*s, dtype=torch.bfloat16) * 0.2)(F, D) * (1.0 / F) ** 0.5),
        }
    _B_in = _B_setup()

    return {
        "A_x": _A_in["x"],
        "A_w_r": _A_in["w_r"],
        "A_w_i": _A_in["w_i"],
        "B_x": _B_in["x"],
        "B_W_gate": _B_in["W_gate"],
        "B_W_up": _B_in["W_up"],
        "B_W_down": _B_in["W_down"],
    }

def reference(A_x, A_w_r, A_w_i, B_x, B_W_gate, B_W_up, B_W_down):
    def _A_ref(x, w_r, w_i):
        B, S, D = x.shape
        X = (lambda x, axes=(-2,-1): torch.fft.rfft2(x.float(), dim=axes))(x, axes=(-2, -1))
        W = w_r + 1j * w_i
        X = X * W
        y = (lambda x, s, axes=(-2,-1): torch.fft.irfft2(x, s=s, dim=axes).to(torch.bfloat16))(X, (S, D), axes=(-2, -1))
        return y

    def _B_ref(x, W_gate, W_up, W_down):
        gate = torch.einsum("bsd,df->bsf", x, W_gate)
        up = torch.einsum("bsd,df->bsf", x, W_up)
        gate = gate * (lambda x, dt: x.to(dt))(gate > 0, gate.dtype)
        h = gate * up
        return torch.einsum("bsf,fd->bsd", h, W_down)

    x = A_x
    xn = _layernorm(x, axis=-1)
    return x + _A_ref(xn, A_w_r, A_w_i) + _B_ref(xn, B_W_gate, B_W_up, B_W_down)
```

```python
import re

TRANS = ("v_exp_", "v_log_", "v_rcp_", "v_rsq_", "v_sqrt_", "v_sin_", "v_cos_")


def regs_of(op):
    op = op.strip()
    op = op.lstrip("-")
    m = re.fullmatch(r"abs\((.*)\)|\|(.*)\|", op)
    if m:
        op = m.group(1) or m.group(2)
    m = re.fullmatch(r"([vas])(\d+)", op)
    if m:
        return {(m.group(1), int(m.group(2)))}
    m = re.fullmatch(r"([vas])\[(\d+):(\d+)\]", op)
    if m:
        return {(m.group(1), i) for i in range(int(m.group(2)), int(m.group(3)) + 1)}
    if op in ("vcc", "vcc_lo", "vcc_hi"):
        return {("s", "vcc")}
    if op == "m0":
        return {("s", "m0")}
    if op in ("exec", "exec_lo", "exec_hi"):
        return {("s", "exec")}
    return set()


class Ins:
    __slots__ = ("text", "op", "kind", "wr", "rd", "passes", "srcc", "srcab", "ws", "dpp", "wide_store", "sdata")


def parse(text):
    t = text.split(";")[0].strip()
    parts = t.split(None, 1)
    op = parts[0]
    rest = parts[1] if len(parts) > 1 else ""
    ops = [o.strip() for o in rest.split(",")] if rest else []
    mods = ""
    if ops:
        last = ops[-1].split(None, 1)
        ops[-1] = last[0]
        mods = last[1] if len(last) > 1 else ""
    i = Ins()
    i.text = text
    i.op = op
    i.wr = set()
    i.rd = set()
    i.passes = 0
    i.srcc = set()
    i.srcab = set()
    i.ws = 1
    i.dpp = any(k in mods for k in ("row_shr", "row_bcast", "quad_perm", "row_ror", "row_shl", "row_mirror", "row_half_mirror", "wave_"))
    i.wide_store = False
    i.sdata = set()
    R = [regs_of(o) for o in ops]
    if op.startswith("v_mfma"):
        i.kind = "mfma"
        i.passes = 8 if "32x32" in op else 4
        i.wr = R[0]
        i.srcab = R[1] | R[2]
        i.srcc = R[3]
        i.rd = i.srcab | i.srcc
    elif op.startswith("v_"):
        i.kind = "valu"
        if op.startswith(TRANS):
            i.kind = "trans"
        if op.startswith("v_dot"):
            i.kind = "dot"
        if "permlane" in op:
            i.kind = "perm"
            i.wr = R[0] | R[1]
            i.rd = R[0] | R[1]
        elif op.startswith(("v_add_co", "v_sub_co", "v_addc_co", "v_subb_co", "v_mad_u64", "v_div_scale")):
            i.wr = R[0] | R[1]
            for r in R[2:]:
                i.rd |= r
        elif op == "v_nop":
            pass
        else:
            i.wr = R[0]
            for r in R[1:]:
                i.rd |= r
            if op.startswith(("v_fmac", "v_dot2c", "v_pk_fmac", "v_writelane")) or i.dpp:
                i.rd |= R[0]
            if op.startswith("v_cndmask") and len(ops) == 3:
                i.rd |= {("s", "vcc")}
        if op.startswith(("v_readlane", "v_readfirstlane")):
            i.kind = "rdlane"
    elif op.startswith("ds_"):
        i.kind = "ds"
        if op.startswith(("ds_read", "ds_bpermute", "ds_swizzle", "ds_permute")):
            i.wr = R[0]
            for r in R[1:]:
                i.rd |= r
        else:
            for r in R:
                i.rd |= r
    elif op.startswith(("buffer_", "global_")):
        i.kind = "vmem"
        is_lds = bool(re.search(r"\blds\b", mods))
        if "load" in op and not is_lds:
            i.wr = R[0]
            for r in R[1:]:
                i.rd |= r
            if "d16" in op:
                i.rd |= R[0]
        else:
            for r in R:
                i.rd |= r
            if is_lds:
                i.rd |= {("s", "m0")}
                i.kind = "dma"
            elif "store" in op and ("x4" in op or "x3" in op):
                i.wide_store = True
                i.sdata = R[0] if op.startswith("buffer_") else R[1]
    elif op.startswith("s_"):
        i.kind = "salu"
        if op == "s_nop":
            i.ws = int(ops[0], 0) + 1
        elif op.startswith(("s_cmp", "s_waitcnt", "s_barrier", "s_branch", "s_cbranch", "s_sleep", "s_setprio", "s_endpgm", "s_bitcmp")):
            for r in R:
                i.rd |= r
        else:
            i.wr = R[0] if R else set()
            for r in R[1:]:
                i.rd |= r
            if "saveexec" in op:
                i.wr |= {("s", "exec")}
    else:
        raise ValueError("unknown instruction " + text)
    return i


VALUISH = ("valu", "trans", "dot", "perm", "rdlane")


def need(p, c):
    n = 0
    pv = p.kind in VALUISH
    cv = c.kind in VALUISH
    pw_v = {r for r in p.wr if r[0] in "va"}
    pw_s = {r for r in p.wr if r[0] == "s"}
    if pv:
        if c.kind == "mfma" and pw_v & c.rd:
            n = max(n, 2)
        if c.kind == "rdlane" and pw_v & c.rd:
            n = max(n, 1)
        if c.kind == "perm" and pw_v & c.rd:
            n = max(n, 2)
        if c.dpp and pw_v & c.rd:
            n = max(n, 2)
        if pw_s:
            if cv and pw_s & c.rd:
                n = max(n, 4 if c.op.startswith(("v_readlane", "v_writelane")) else 2)
            if c.kind in ("vmem", "dma") and pw_s & c.rd:
                n = max(n, 5)
            if c.kind == "salu" and pw_s & c.rd:
                n = max(n, 1)
        if p.kind == "trans" and (cv or c.kind == "mfma") and c.kind != "trans" and pw_v & c.rd:
            n = max(n, 1)
        if p.kind == "dot" and pw_v & (c.rd | c.wr):
            if not (c.kind == "dot" and c.op == p.op and not (pw_v & (c.rd - c.wr))):
                n = max(n, 3)
    if p.kind == "mfma":
        big = {4: 8, 8: 12}[p.passes]
        if c.kind == "mfma":
            if p.wr & c.srcab:
                n = max(n, big)
            if p.wr & c.srcc:
                if not (c.srcc == p.wr and c.passes == p.passes):
                    n = max(n, {4: 6, 8: 10}[p.passes])
            elif p.wr & c.wr:
                n = max(n, big)
        else:
            if p.wr & (c.rd | c.wr):
                n = max(n, big)
            if cv and p.srcc & c.wr:
                n = max(n, {4: 3, 8: 7}[p.passes])
            if c.kind in ("ds", "vmem") and p.srcc & c.wr:
                n = max(n, {4: 3, 8: 7}[p.passes])
    if p.kind == "salu" and ("s", "m0") in p.wr and c.kind == "dma":
        n = max(n, 1)
    if p.wide_store and p.sdata & c.wr:
        n = max(n, 2 if cv else 1)
    return n


class Emit:
    def __init__(self):
        self.lines = []
        self.hist = []
        self.vmq = []
        self.lgq = []
        self.nins = 0

    def raw(self, s):
        self.lines.append(s)

    def comment(self, s):
        self.lines.append("    ; " + s)

    def label(self, name, pad=True):
        self.lines.append(name + ":")
        self.hist = []

    def I(self, text, tag=None):
        ins = parse(text)
        dist = 0
        req = 0
        for p in reversed(self.hist):
            r = need(p, ins) - dist
            if r > req:
                req = r
            dist += p.ws
            if dist > 24:
                break
        while req > 0:
            k = min(req, 16)
            n = parse(f"s_nop {k-1}")
            self.lines.append(f"    s_nop {k-1}")
            self.hist.append(n)
            req -= k
        self.lines.append("    " + text)
        self.hist.append(ins)
        self.nins += 1
        if len(self.hist) > 40:
            self.hist = self.hist[-30:]
        if ins.kind in ("vmem", "dma"):
            self.vmq.append(tag)
        elif ins.kind == "ds":
            self.lgq.append(tag)
        return ins

    def __call__(self, text, tag=None):
        return self.I(text, tag)

    def _wait(self, q, tags, name, maxn):
        if not isinstance(tags, (list, set)):
            tags = [tags]
        idx = -1
        for k, t in enumerate(q):
            if t in tags:
                idx = k
        if idx < 0:
            return q
        n = len(q) - 1 - idx
        if n > maxn:
            n = maxn
            idx = len(q) - 1 - n
        self.I(f"s_waitcnt {name}({n})")
        return q[idx + 1:]

    def wait_vm(self, tags):
        self.vmq = self._wait(self.vmq, tags, "vmcnt", 63)

    def wait_lg(self, tags):
        self.lgq = self._wait(self.lgq, tags, "lgkmcnt", 15)

    def wait_vm0(self):
        self.I("s_waitcnt vmcnt(0)")
        self.vmq = []

    def wait_lg0(self):
        self.I("s_waitcnt lgkmcnt(0)")
        self.lgq = []

    def text(self):
        return "\n".join(self.lines) + "\n"
```

```python
import sys
import numpy as np
sys.path.insert(0, "dev")
from emit import Emit

KN = "parallel_sum__spectral_gfnet__glu_gated_reglu__prompt_kernel"

WS_GEN = 0
WS_F1 = 0x1000
WS_F2 = 0x1400
WS_FW = 0x1800
WS_FZ = 0x1C00
WS_RS = 0x10000
WS_CS = 0x20000
WS_H = 0x100000
WS_UT = 0x900000
WS_ZT = 0xB00000
WS_WT = 0xD00000
WS_SIZE = 0x1000000

L_A = 0
L_B = 0x10000
L_X = 0x20000
L_U = L_X
L_V = L_X + 0x2000
L_CSCH = L_X
L_MR = L_X + 0x4000
L_R = L_X + 0x4400
L_CS = L_X + 0x4800
LDS_BYTES = 0x20000 + 0x5000

CT_F = 0
CT_G = 0x80000
CT_E64 = 0x100000
CT_E32 = 0x104000
CT_SIZE = 0x105000

SPIN_MAX = 1 << 20


def bf16_bits(x):
    u = np.asarray(x, dtype=np.float32).view(np.uint32)
    return (((u + 0x7FFF + ((u >> 16) & 1)) >> 16) & 0xFFFF).astype(np.uint32)


def cos_table():
    T = bf16_bits(np.cos(2 * np.pi * np.arange(512) / 512))
    T[128] = 0
    T[256:] = T[:256] ^ 0x8000
    T[384] = 0
    return T


S_X, S_WS, S_WG, S_WU, S_WD, S_OUT, S_WR, S_WI, S_CT, S_BS = 8, 12, 16, 20, 24, 28, 32, 36, 40, 44
sTAG, sMT, sNT, sW, sWR, sWC, sI, sXCD = 68, 69, 70, 71, 72, 73, 74, 75
sT0, sT1, sT2, sT3, sT4 = 76, 77, 78, 79, 80
sAOFF, sBOFF1, sBOFF2, sLDSW, sU1, sU2, sST, sDT, sSPIN = 81, 82, 83, 84, 85, 86, 87, 88, 89
sEX = 90
sSCALE = 92


def srd(b):
    return f"s[{b}:{b+3}]"


def vr(b, n=1):
    return f"v{b}" if n == 1 else f"v[{b}:{b+n-1}]"


def ar(b, n=1):
    return f"a{b}" if n == 1 else f"a[{b}:{b+n-1}]"


vTID, vLANE = 0, 1
vADMA0, vADMA1 = 2, 3
vBDMA = 4
vBDMAF = 5
vBDMAZ = 6
vARD = 8
vBRD = 12
vT = 16
vBF = 32
vT2 = 56
vACC1 = 64
vACC2 = 128
vE = 192

lblcnt = [0]


def newlabel(p):
    lblcnt[0] += 1
    return f"L_{p}_{lblcnt[0]}"


def poll_flags(e, vaddr, vtmp):
    L = newlabel("poll")
    Ld = newlabel("polld")
    e(f"s_mov_b32 s{sSPIN}, 0")
    e.label(L)
    e(f"buffer_load_dword v{vtmp}, v{vaddr}, {srd(S_WS)}, 0 offen sc1")
    e.wait_vm0()
    e(f"v_cmp_ne_u32 vcc, s{sTAG}, v{vtmp}")
    e("s_nop 4")
    e(f"s_cbranch_vccz {Ld}")
    e("s_sleep 1")
    e(f"s_add_u32 s{sSPIN}, s{sSPIN}, 1")
    e(f"s_cmp_lt_u32 s{sSPIN}, {SPIN_MAX}")
    e(f"s_cbranch_scc1 {L}")
    e.label(Ld)


def set_flag(e, base, sidx):
    Ls = newlabel("nf")
    e(f"s_cmp_lg_u32 s{sW}, 0")
    e(f"s_cbranch_scc1 {Ls}")
    e(f"s_lshl_b32 s{sT0}, s{sidx}, 2")
    e(f"s_add_u32 s{sT0}, s{sT0}, {base}")
    e(f"v_mov_b32 v62, s{sTAG}")
    e(f"v_mov_b32 v63, 0")
    e(f"s_mov_b64 s[{sEX}:{sEX+1}], exec")
    e("s_mov_b64 exec, 1")
    e(f"buffer_store_dword v62, v63, {srd(S_WS)}, s{sT0} offen sc1")
    e(f"s_mov_b64 exec, s[{sEX}:{sEX+1}]")
    e.vmq.pop()
    e.label(Ls)


def gen():
    e = Emit()
    T = cos_table()
    e.raw(f"; @launch grid=(256,1,1) block=(256,1,1) lds={LDS_BYTES}")
    e.raw('.amdgcn_target "amdgcn-amd-amdhsa--gfx950"')
    e.raw(".text")
    e.raw("@@TABLE@@")
    e.raw(f".globl {KN}")
    e.raw(".p2align 8")
    e.raw(f".type {KN},@function")
    e.raw(f"{KN}:")
    e("s_cmp_ge_u32 s2, 256")
    e("s_cbranch_scc1 L_end")
    e("s_load_dwordx16 s[48:63], s[0:1], 0")
    e("s_load_dwordx4 s[64:67], s[0:1], 64")
    e("s_getpc_b64 s[40:41]")
    e.raw("L_pc:")
    e("s_sub_u32 s40, s40, L_pc-CTAB")
    e("s_subb_u32 s41, s41, 0")
    e(f"s_mov_b32 s42, {CT_SIZE}")
    e("s_mov_b32 s43, 0x00020000")
    e(f"s_and_b32 s{sXCD}, s2, 7")
    e(f"s_lshr_b32 s{sI}, s2, 3")
    e(f"s_and_b32 s{sT0}, s{sXCD}, 1")
    e(f"s_lshl_b32 s{sT0}, s{sT0}, 3")
    e(f"s_and_b32 s{sT1}, s{sI}, 7")
    e(f"s_add_u32 s{sMT}, s{sT0}, s{sT1}")
    e(f"s_lshr_b32 s{sT0}, s{sXCD}, 1")
    e(f"s_lshl_b32 s{sT0}, s{sT0}, 2")
    e(f"s_lshr_b32 s{sT1}, s{sI}, 3")
    e(f"s_add_u32 s{sNT}, s{sT0}, s{sT1}")
    e(f"s_lshl_b32 s{sST}, s{sXCD}, 2")
    e(f"s_add_u32 s{sST}, s{sST}, s{sT1}")
    e(f"s_and_b32 s{sDT}, s{sI}, 7")
    e(f"v_lshrrev_b32 v{vT}, 6, v0")
    e(f"v_and_b32 v{vLANE}, 63, v0")
    e(f"v_readfirstlane_b32 s{sW}, v{vT}")
    e(f"s_lshr_b32 s{sWR}, s{sW}, 1")
    e(f"s_and_b32 s{sWC}, s{sW}, 1")
    e(f"s_lshl_b32 s{sLDSW}, s{sW}, 12")
    e(f"s_sub_u32 s{sT0}, s{sNT}, 4")
    e(f"s_lshl_b32 s{sU1}, s{sT0}, 1")
    e(f"s_add_u32 s{sU2}, s{sU1}, 1")
    e(f"s_add_u32 s{sT0}, s{sNT}, 24")
    e(f"s_cmp_lt_u32 s{sNT}, 4")
    e(f"s_cselect_b32 s{sU2}, s{sT0}, s{sU2}")
    e(f"s_cselect_b32 s{sU1}, s{sT0}, s{sU1}")
    l3, pc = vT, vT + 1
    e(f"v_lshrrev_b32 v{l3}, 3, v{vLANE}")
    e(f"v_and_b32 v{pc}, 7, v{vLANE}")
    e(f"v_lshrrev_b32 v{vT+2}, 1, v{l3}")
    e(f"v_xor_b32 v{vT+2}, v{vT+2}, v{pc}")
    e(f"v_lshlrev_b32 v{vT+2}, 4, v{vT+2}")
    e(f"v_lshlrev_b32 v{vT+3}, 15, v{l3}")
    e(f"v_add_u32 v{vADMA0}, v{vT+2}, v{vT+3}")
    e(f"v_xor_b32 v{vADMA1}, 64, v{vADMA0}")
    e(f"v_lshrrev_b32 v{vT+2}, 2, v{vLANE}")
    e(f"v_and_b32 v{vT+2}, 4, v{vT+2}")
    e(f"v_xor_b32 v{vT+2}, v{vT+2}, v{pc}")
    e(f"v_lshlrev_b32 v{vT+2}, 4, v{vT+2}")
    e(f"v_mul_u32_u24 v{vT+3}, 3584, v{l3}")
    e(f"v_add_u32 v{vBDMA}, v{vT+2}, v{vT+3}")
    e(f"v_lshlrev_b32 v{vT+3}, 10, v{l3}")
    e(f"v_add_u32 v{vBDMAF}, v{vT+2}, v{vT+3}")
    e(f"v_lshlrev_b32 v{vT+3}, 12, v{l3}")
    e(f"v_add_u32 v{vBDMAZ}, v{vT+2}, v{vT+3}")
    e(f"v_and_b32 v{vT}, 31, v{vLANE}")
    e(f"v_lshrrev_b32 v{vT+1}, 5, v{vLANE}")
    e(f"v_lshrrev_b32 v{vT+2}, 1, v{vT}")
    e(f"v_and_b32 v{vT+2}, 7, v{vT+2}")
    e(f"v_xor_b32 v{vT+2}, v{vT+2}, v{vT+1}")
    e(f"s_lshl_b32 s{sT0}, s{sWR}, 13")
    e(f"v_lshlrev_b32 v{vT+3}, 7, v{vT}")
    e(f"v_add_u32 v{vT+3}, s{sT0}, v{vT+3}")
    for ks in range(4):
        e(f"v_xor_b32 v{vT+4}, {2*ks}, v{vT+2}")
        e(f"v_lshlrev_b32 v{vT+4}, 4, v{vT+4}")
        e(f"v_add_u32 v{vARD+ks}, v{vT+3}, v{vT+4}")

    def tr_base(dst, ct_sgpr, ct_const, perm, add):
        e(f"v_lshrrev_b32 v{vT}, 2, v{vLANE}")
        e(f"v_and_b32 v{vT}, 3, v{vT}")
        e(f"v_lshrrev_b32 v{vT+1}, 5, v{vLANE}")
        e(f"v_lshlrev_b32 v{vT+1}, {2 if perm else 3}, v{vT+1}")
        e(f"v_add_u32 v{vT+1}, v{vT+1}, v{vT}")
        e(f"v_lshlrev_b32 v{vT+1}, 7, v{vT+1}")
        e(f"v_lshrrev_b32 v{vT}, 1, v{vT}")
        if ct_sgpr is not None:
            e(f"v_xor_b32 v{vT}, s{ct_sgpr}, v{vT}")
        elif ct_const:
            e(f"v_xor_b32 v{vT}, 1, v{vT}")
        e(f"v_lshlrev_b32 v{vT}, 6, v{vT}")
        e(f"v_add_u32 v{vT+1}, v{vT+1}, v{vT}")
        e(f"v_and_b32 v{vT}, 16, v{vLANE}")
        e(f"v_lshlrev_b32 v{vT}, 1, v{vT}")
        e(f"v_add_u32 v{vT+1}, v{vT+1}, v{vT}")
        e(f"v_and_b32 v{vT}, 3, v{vLANE}")
        e(f"v_lshlrev_b32 v{vT}, 3, v{vT}")
        e(f"v_add_u32 v{vT+1}, v{vT+1}, v{vT}")
        if isinstance(add, str):
            e(f"v_add_u32 v{dst}, {add}, v{vT+1}")
        else:
            e(f"v_add_u32 v{dst}, {add}, v{vT+1}")

    tr_base(vBRD, sWC, 0, False, L_B)

    e("s_waitcnt lgkmcnt(0)")
    for b, p, n in ((S_X, 48, 2097152), (S_WR, 50, 2048 * 514), (S_WI, 52, 2048 * 514), (S_WG, 56, 512 * 3584),
                    (S_WU, 58, 512 * 3584), (S_WD, 60, 1792 * 1024), (S_OUT, 62, 2097152), (S_WS, 66, WS_SIZE)):
        e(f"s_mov_b32 s{b}, s{p}")
        e(f"s_mov_b32 s{b+1}, s{p+1}")
        e(f"s_mov_b32 s{b+2}, {n}")
        e(f"s_mov_b32 s{b+3}, 0x00020000")
    e(f"s_load_dword s{sTAG}, s[66:67], {WS_GEN}")
    e(f"s_cmp_lt_u32 s{sW}, 2")
    e(f"s_cselect_b32 s{S_BS}, s56, s58")
    e(f"s_cselect_b32 s{S_BS+1}, s57, s59")
    e(f"s_mov_b32 s{S_BS+2}, {512*3584}")
    e(f"s_mov_b32 s{S_BS+3}, 0x00020000")
    e(f"s_and_b32 s{sT0}, s{sMT}, 7")
    e(f"s_lshl_b32 s{sT0}, s{sT0}, 18")
    e(f"s_lshr_b32 s{sT1}, s{sMT}, 3")
    e(f"s_lshl_b32 s{sT1}, s{sT1}, 14")
    e(f"s_add_u32 s{sAOFF}, s{sT0}, s{sT1}")
    e(f"s_mul_i32 s{sT0}, s{sWC}, {32*3584}")
    e(f"s_lshl_b32 s{sT1}, s{sU1}, 7")
    e(f"s_add_u32 s{sBOFF1}, s{sT0}, s{sT1}")
    e(f"s_lshl_b32 s{sT1}, s{sU2}, 7")
    e(f"s_add_u32 s{sBOFF2}, s{sT0}, s{sT1}")
    e("s_waitcnt lgkmcnt(0)")
    e(f"s_add_u32 s{sTAG}, s{sTAG}, 1")

    e(f"s_lshr_b32 s{sT0}, s{sST}, 3")
    e(f"s_lshl_b32 s{sT0}, s{sT0}, 4")
    e(f"s_and_b32 s{sT1}, s{sST}, 7")
    e(f"s_lshl_b32 s{sT1}, s{sT1}, 8")
    e(f"s_add_u32 s{sT0}, s{sT0}, s{sT1}")
    e(f"s_mul_i32 s{sT0}, s{sT0}, 514")
    e(f"s_lshl_b32 s{sT1}, s{sDT}, 6")
    e(f"s_add_u32 s{sT0}, s{sT0}, s{sT1}")
    e(f"s_add_u32 s{sT0}, s{sT0}, 2")
    e(f"v_and_b32 v{vT}, 31, v0")
    e(f"v_lshrrev_b32 v{vT+1}, 5, v0")
    e(f"v_mul_u32_u24 v{vT+2}, 514, v{vT+1}")
    e(f"v_lshl_add_u32 v{vT+2}, v{vT}, 1, v{vT+2}")
    for it in range(2):
        for ee in range(4):
            e(f"s_add_u32 s{sT1}, s{sT0}, {(8*it + 64*ee)*514}")
            e(f"buffer_load_ushort v{vE+4*it+ee}, v{vT+2}, {srd(S_WR)}, s{sT1} offen")
            e(f"buffer_load_ushort v{vE+8+4*it+ee}, v{vT+2}, {srd(S_WI)}, s{sT1} offen")
    e(f"s_lshl_b32 s{sT0}, s{sDT}, 18")
    e(f"s_lshl_b32 s{sT1}, s{sST}, 8")
    e(f"s_add_u32 s{sT0}, s{sT0}, s{sT1}")
    e(f"s_add_u32 s{sT0}, s{sT0}, {WS_WT}")
    e(f"v_lshlrev_b32 v{vT+2}, 13, v{vT}")
    e(f"v_lshl_add_u32 v{vT+2}, v{vT+1}, 4, v{vT+2}")
    e.wait_vm0()
    for j in range(8):
        e(f"v_lshl_or_b32 v{vE+j}, v{vE+8+j}, 16, v{vE+j}")
    for it in range(2):
        e(f"buffer_store_dwordx4 {vr(vE+4*it,4)}, v{vT+2}, {srd(S_WS)}, s{sT0} offen offset:{128*it} sc1")

    e(f"s_lshr_b32 s{sT0}, s{sMT}, 2")
    e(f"s_and_b32 s{sT1}, s{sMT}, 3")
    e(f"s_cmp_lt_u32 s{sT0}, 2")
    e(f"s_cselect_b32 s{sT2}, s{sU1}, s{sU2}")
    e(f"s_and_b32 s{sT0}, s{sT0}, 1")
    e(f"s_cmp_eq_u32 s{sT0}, 0")
    e(f"s_cselect_b32 s4, s56, s58")
    e(f"s_cselect_b32 s5, s57, s59")
    e(f"s_mov_b32 s6, {512*3584}")
    e("s_mov_b32 s7, 0x00020000")
    e(f"s_lshl_b32 s{sT3}, s{sT1}, 2")
    e(f"s_add_u32 s{sT3}, s{sT3}, s{sW}")
    e(f"s_mul_i32 s{sT3}, s{sT3}, {32*3584}")
    e(f"s_lshl_b32 s{sT4}, s{sT2}, 7")
    e(f"s_add_u32 s{sT3}, s{sT3}, s{sT4}")
    for i in range(4):
        e(f"s_add_u32 m0, s{sLDSW}, {L_CSCH + i*1024}")
        e(f"s_add_u32 s{sT4}, s{sT3}, {8*i*3584}")
        e(f"buffer_load_dwordx4 v{vBDMA}, s[4:7], s{sT4} offen lds")
    e(f"s_lshl_b32 s{sT2}, s{sT2}, 1")
    e(f"s_add_u32 s{sT2}, s{sT2}, s{sT0}")
    e(f"s_lshl_b32 s{sT2}, s{sT2}, 2")
    e(f"s_add_u32 s{sT2}, s{sT2}, s{sT1}")
    e(f"s_lshl_b32 s{sT2}, s{sT2}, 9")
    e(f"s_add_u32 s{sT2}, s{sT2}, {WS_CS}")
    e(f"s_lshl_b32 s{sT3}, s{sNT}, 10")
    e(f"s_add_u32 s{sT3}, s{sT3}, s{sAOFF}")
    e(f"s_lshl_b32 s{sT4}, s{sW}, 16")
    e(f"s_add_u32 s{sT3}, s{sT3}, s{sT4}")
    e(f"v_lshlrev_b32 v{vT}, 4, v{vLANE}")
    e(f"buffer_load_dwordx4 {vr(vE+8,4)}, v{vT}, {srd(S_X)}, s{sT3} offen")
    e(f"s_add_u32 s{sT3}, s{sT3}, 32768")
    e(f"buffer_load_dwordx4 {vr(vE+12,4)}, v{vT}, {srd(S_X)}, s{sT3} offen")
    e.wait_vm0()
    e("s_barrier")
    set_flag(e, WS_FW, None) if False else None
    e(f"s_lshl_b32 s{sT3}, s{sDT}, 5")
    e(f"s_add_u32 s{sT3}, s{sT3}, s{sST}")
    set_flag(e, WS_FW, sT3)

    def wave_sum(regs):
        for ctl in ("row_shr:1", "row_shr:2", "row_shr:4", "row_shr:8", "row_bcast:15 row_mask:0xa", "row_bcast:31 row_mask:0xc"):
            for r in regs:
                e(f"v_add_f32_dpp v{r}, v{r}, v{r} {ctl}")

    for rr in range(2):
        for d in range(4):
            e(f"v_lshlrev_b32 v{vE+16+8*rr+2*d}, 16, v{vE+8+4*rr+d}")
            e(f"v_and_b32 v{vE+17+8*rr+2*d}, 0xffff0000, v{vE+8+4*rr+d}")
    for rr in range(2):
        e(f"v_add_f32 v{vE+32+rr}, v{vE+16+8*rr}, v{vE+17+8*rr}")
        for d in range(2, 8):
            e(f"v_add_f32 v{vE+32+rr}, v{vE+32+rr}, v{vE+16+8*rr+d}")
    wave_sum([vE + 32, vE + 33])
    e(f"v_readlane_b32 s{sT3}, v{vE+32}, 63")
    e(f"v_readlane_b32 s{sT4}, v{vE+33}, 63")
    e(f"v_mov_b32 v{vE+34}, 0x3b000000")
    e(f"v_mul_f32 v{vE+32}, s{sT3}, v{vE+34}")
    e(f"v_mul_f32 v{vE+33}, s{sT4}, v{vE+34}")
    for rr in range(2):
        for d in range(8):
            e(f"v_sub_f32 v{vE+16+8*rr+d}, v{vE+16+8*rr+d}, v{vE+32+rr}")
        e(f"v_mul_f32 v{vE+36+rr}, v{vE+16+8*rr}, v{vE+16+8*rr}")
        for d in range(1, 8):
            e(f"v_fmac_f32 v{vE+36+rr}, v{vE+16+8*rr+d}, v{vE+16+8*rr+d}")
    wave_sum([vE + 36, vE + 37])
    e(f"v_readlane_b32 s{sT3}, v{vE+36}, 63")
    e(f"v_readlane_b32 s{sT4}, v{vE+37}, 63")
    e(f"v_cmp_eq_u32 vcc, 1, v{vLANE}")
    e(f"v_mov_b32 v{vE+38}, s{sT3}")
    e(f"v_mov_b32 v{vE+39}, s{sT4}")
    e(f"v_cndmask_b32 v{vE+38}, v{vE+38}, v{vE+39}, vcc")
    e(f"v_cndmask_b32 v{vE+40}, v{vE+32}, v{vE+33}, vcc")
    e(f"v_mul_f32 v{vE+38}, v{vE+38}, v{vE+34}")

    def rbf(r):
        e(f"v_cvt_pk_bf16_f32 v{r}, v{r}, v{r}")
        e(f"v_and_b32 v{r}, 0xffff0000, v{r}")
    rbf(vE + 38)
    rbf(vE + 40)
    e(f"v_add_f32 v{vE+38}, 0x3727c5ac, v{vE+38}")
    rbf(vE + 38)
    e(f"v_sqrt_f32 v{vE+38}, v{vE+38}")
    rbf(vE + 38)
    e(f"v_rcp_f32 v{vE+41}, v{vE+38}")
    e(f"v_mov_b32 v{vE+42}, s{sTAG}")
    e(f"v_mov_b32 v{vE+43}, s{sTAG}")
    e(f"s_lshl_b32 s{sT3}, s{sMT}, 7")
    e(f"s_lshl_b32 s{sT4}, s{sNT}, 3")
    e(f"s_add_u32 s{sT3}, s{sT3}, s{sT4}")
    e(f"s_lshl_b32 s{sT4}, s{sW}, 1")
    e(f"s_add_u32 s{sT3}, s{sT3}, s{sT4}")
    e(f"s_lshl_b32 s{sT3}, s{sT3}, 4")
    e(f"s_add_u32 s{sT3}, s{sT3}, {WS_RS}")
    e(f"s_mov_b64 s[{sEX}:{sEX+1}], exec")
    e("s_mov_b64 exec, 3")
    e(f"buffer_store_dwordx4 {vr(vE+40,4)}, v{vT}, {srd(S_WS)}, s{sT3} offen sc1")
    e(f"s_mov_b64 exec, s[{sEX}:{sEX+1}]")
    Lncs = newlabel("ncs")
    e(f"s_cmp_ge_u32 s{sW}, 2")
    e(f"s_cbranch_scc1 {Lncs}")
    for d in range(4):
        e(f"v_mov_b32 v{vE+d}, 0x3f803f80")
    e(f"v_add_u32 v{vT+8}, {L_CSCH - L_B}, v{vBRD}")
    for ks in range(8):
        for rr in range(2):
            e(f"ds_read_b64_tr_b16 {vr(vBF+2*rr,2)}, v{vT+8} offset:{(16*ks+4*rr)*128}")
        e.wait_lg0()
        e(f"v_mfma_f32_32x32x16_bf16 {vr(vACC1,16)}, {vr(vE,4)}, {vr(vBF,4)}, {'0' if ks == 0 else vr(vACC1,16)}")
        e("s_nop 7")
    e(f"v_mov_b32 v{vE+4}, v{vACC1}")
    e(f"v_mov_b32 v{vE+5}, s{sTAG}")
    e(f"v_lshlrev_b32 v{vT+8}, 3, v{vLANE}")
    e(f"s_lshl_b32 s{sT3}, s{sW}, 8")
    e(f"s_add_u32 s{sT3}, s{sT3}, s{sT2}")
    e(f"s_mov_b64 s[{sEX}:{sEX+1}], exec")
    e("s_mov_b32 exec_hi, 0")
    e(f"buffer_store_dwordx2 {vr(vE+4,2)}, v{vT+8}, {srd(S_WS)}, s{sT3} offen sc1")
    e(f"s_mov_b64 exec, s[{sEX}:{sEX+1}]")
    e.label(Lncs)
    e.wait_vm0()
    e.wait_lg0()
    e("s_barrier")

    def dma_A(t):
        slot = t & 3
        for i in range(4):
            e(f"s_add_u32 m0, s{sLDSW}, {L_A + slot*16384 + i*1024}")
            e(f"s_add_u32 s{sT0}, s{sAOFF}, s{sLDSW}")
            e(f"s_add_u32 s{sT0}, s{sT0}, {i*1024 + t*128}")
            e(f"buffer_load_dwordx4 v{vADMA1 if i & 1 else vADMA0}, {srd(S_X)}, s{sT0} offen lds", tag=("A", t))

    def dma_B(n, dft):
        slot = n & 3
        t = n & 7
        for i in range(4):
            e(f"s_add_u32 m0, s{sLDSW}, {L_B + slot*16384 + i*1024}")
            if dft and n < 8:
                e(f"s_add_u32 s{sT0}, s{sT4}, {(64*t + 8*i)*1024}")
                e(f"buffer_load_dwordx4 v{vBDMAF}, {srd(S_CT)}, s{sT0} offen lds", tag=("B", n))
            else:
                e(f"s_add_u32 s{sT0}, s{sBOFF1 if n < 8 else sBOFF2}, {(64*t + 8*i)*3584}")
                e(f"buffer_load_dwordx4 v{vBDMA}, {srd(S_BS)}, s{sT0} offen lds", tag=("B", n))

    def reads(g):
        n = g >> 2
        ks = g & 3
        slot = n & 3
        buf = vBF + 8 * (g % 3)
        out = []
        if g < 32:
            for rt in range(2):
                out.append((f"ds_read_b128 {ar(8*g+4*rt,4)}, v{vARD+ks} offset:{L_A + slot*16384 + rt*4096}", ("R", g)))
        for X in range(2):
            for rr in range(2):
                out.append((f"ds_read_b64_tr_b16 {vr(buf+4*X+2*rr,2)}, v{vBRD} offset:{slot*16384 + X*8192 + (16*ks+4*rr)*128}", ("R", g)))
        return out

    def p1_main(dft):
        if dft:
            e(f"s_lshl_b32 s{sT4}, s{sNT}, 8")
            e(f"s_lshl_b32 s{sT3}, s{sWR}, 7")
            e(f"s_add_u32 s{sT4}, s{sT4}, s{sT3}")
            e(f"s_lshl_b32 s{sT3}, s{sWC}, 15")
            e(f"s_add_u32 s{sT4}, s{sT4}, s{sT3}")
            if CT_F:
                e(f"s_add_u32 s{sT4}, s{sT4}, {CT_F}")
        for t in range(3):
            dma_A(t)
            dma_B(t, dft)
        e.wait_vm(("B", 0))
        e("s_barrier")
        for g in range(2):
            for txt, tg in reads(g):
                e(txt, tag=tg)
        for g in range(64):
            n = g >> 2
            ks = g & 3
            ps = g >> 5
            acc = vACC2 if ps else vACC1
            buf = vBF + 8 * (g % 3)
            fill = []
            if ks == 2 and n + 1 < 16:
                e.wait_vm(("B", n + 1))
                e("s_barrier")
            if g + 2 < 64:
                fill += reads(g + 2)
            e.wait_lg(("R", g))
            k = 0
            gg = g & 31
            for rt in range(2):
                for X in range(2):
                    d = acc + 32 * X + 16 * rt
                    c = "0" if gg == 0 else vr(d, 16)
                    A = ar(8 * gg + 4 * rt, 4)
                    B = vr(buf + 4 * X, 4)
                    if dft and ps == 0:
                        e(f"v_mfma_f32_32x32x16_bf16 {vr(d,16)}, {A}, {B}, {c}")
                    else:
                        e(f"v_mfma_f32_32x32x16_bf16 {vr(d,16)}, {B}, {A}, {c}")
                    for txt, tg in fill[k:k + 2]:
                        e(txt, tag=tg)
                    k += 2
            if ks == 2:
                if n + 3 < 8:
                    dma_A(n + 3)
            if ks == 3:
                if n + 3 < 16:
                    dma_B(n + 3, dft)

    def load_stats():
        e.comment("---- gather stats ----")
        L = newlabel("st")
        Ld = newlabel("std")
        e(f"v_and_b32 v{vT}, 127, v0")
        e(f"v_lshlrev_b32 v{vT+1}, 4, v{vT}")
        e(f"s_lshl_b32 s{sT0}, s{sMT}, 11")
        e(f"s_add_u32 s{sT0}, s{sT0}, {WS_RS}")
        e(f"s_cmp_eq_u32 s{sWR}, 0")
        e(f"s_cselect_b32 s{sT1}, s{sU1}, s{sU2}")
        e(f"s_lshl_b32 s{sT1}, s{sT1}, 1")
        e(f"s_add_u32 s{sT1}, s{sT1}, s{sWC}")
        e(f"s_lshl_b32 s{sT1}, s{sT1}, 11")
        e(f"s_add_u32 s{sT1}, s{sT1}, {WS_CS}")
        e(f"v_lshlrev_b32 v{vT+2}, 3, v{vLANE}")
        e(f"s_mov_b32 s{sSPIN}, 0")
        e.label(L)
        e(f"buffer_load_dwordx4 {vr(vE,4)}, v{vT+1}, {srd(S_WS)}, s{sT0} offen sc1")
        for kq in range(4):
            e(f"buffer_load_dwordx2 {vr(vE+4+2*kq,2)}, v{vT+2}, {srd(S_WS)}, s{sT1} offen offset:{512*kq} sc1")
        e.wait_vm0()
        e(f"v_xor_b32 v{vT+3}, s{sTAG}, v{vE+2}")
        e(f"v_xor_b32 v{vT+4}, s{sTAG}, v{vE+3}")
        e(f"v_or_b32 v{vT+3}, v{vT+3}, v{vT+4}")
        for kq in range(4):
            e(f"v_xor_b32 v{vT+4}, s{sTAG}, v{vE+5+2*kq}")
            e(f"v_or_b32 v{vT+3}, v{vT+3}, v{vT+4}")
        e(f"v_cmp_ne_u32 vcc, 0, v{vT+3}")
        e("s_nop 4")
        e(f"s_cbranch_vccz {Ld}")
        e("s_sleep 1")
        e(f"s_add_u32 s{sSPIN}, s{sSPIN}, 1")
        e(f"s_cmp_lt_u32 s{sSPIN}, {SPIN_MAX}")
        e(f"s_cbranch_scc1 {L}")
        e.label(Ld)
        e(f"v_add_f32 v{vE+4}, v{vE+4}, v{vE+6}")
        e(f"v_add_f32 v{vE+8}, v{vE+8}, v{vE+10}")
        e(f"v_add_f32 v{vE+4}, v{vE+4}, v{vE+8}")
        e(f"v_lshlrev_b32 v{vT+3}, 3, v{vT}")
        e(f"v_add_u32 v{vT+3}, {L_MR}, v{vT+3}")
        e(f"ds_write_b64 v{vT+3}, {vr(vE,2)}")
        e(f"v_lshlrev_b32 v{vT+3}, 2, v{vT}")
        e(f"v_add_u32 v{vT+3}, {L_R}, v{vT+3}")
        e(f"ds_write_b32 v{vT+3}, v{vE+1}")
        e(f"v_lshlrev_b32 v{vT+3}, 2, v0")
        e(f"v_add_u32 v{vT+3}, {L_CS}, v{vT+3}")
        e(f"ds_write_b32 v{vT+3}, v{vE+4}")
        e.wait_lg0()
        e("s_barrier")

    def epi_glu(ps):
        acc = vACC2 if ps else vACC1
        sU = sU2 if ps else sU1
        e(f"v_and_b32 v{vT}, 31, v{vLANE}")
        e(f"v_lshlrev_b32 v{vT}, 3, v{vT}")
        e(f"s_lshl_b32 s{sT0}, s{sWR}, 9")
        e(f"s_add_u32 s{sT0}, s{sT0}, {L_MR}")
        e(f"v_add_u32 v{vT}, s{sT0}, v{vT}")
        e(f"ds_read_b64 {vr(vT+2,2)}, v{vT}")
        e(f"ds_read_b64 {vr(vT+4,2)}, v{vT} offset:256")
        e(f"v_lshrrev_b32 v{vT+1}, 5, v{vLANE}")
        e(f"v_lshlrev_b32 v{vT+1}, 4, v{vT+1}")
        e(f"s_lshl_b32 s{sT0}, s{sWC}, 7")
        e(f"s_add_u32 s{sT0}, s{sT0}, {L_CS + ps*512}")
        e(f"v_add_u32 v{vT+1}, s{sT0}, v{vT+1}")
        for X in range(2):
            for i in range(4):
                e(f"ds_read_b128 {vr(vE+16*X+4*i,4)}, v{vT+1} offset:{X*256 + i*32}")
        e.wait_lg0()
        e(f"v_mul_f32 v{vT+3}, v{vT+3}, v{vT+3}")
        e(f"v_mul_f32 v{vT+5}, v{vT+5}, v{vT+5}")
        e(f"s_lshl_b32 s{sT0}, s{sMT}, 2")
        e(f"s_lshl_b32 s{sT1}, s{sWR}, 1")
        e(f"s_add_u32 s{sT0}, s{sT0}, s{sT1}")
        e(f"s_mul_i32 s{sT0}, s{sT0}, 56")
        e(f"s_lshl_b32 s{sT1}, s{sU}, 1")
        e(f"s_add_u32 s{sT0}, s{sT0}, s{sT1}")
        e(f"s_add_u32 s{sT0}, s{sT0}, s{sWC}")
        e(f"s_lshl_b32 s{sT0}, s{sT0}, 11")
        e(f"s_add_u32 s{sT0}, s{sT0}, {WS_H}")
        e(f"v_lshlrev_b32 v{vT}, 4, v{vLANE}")
        for st in range(2):
            m = vT + 2 + 2 * st
            r2 = m + 1
            for j in range(16):
                g = acc + 16 * st + j
                u = acc + 32 + 16 * st + j
                e(f"v_fma_f32 v{g}, -v{m}, v{vE+j}, v{g}")
                e(f"v_fma_f32 v{u}, -v{m}, v{vE+16+j}, v{u}")
                e(f"v_max_f32 v{g}, 0, v{g}")
                e(f"v_mul_f32 v{u}, v{u}, v{r2}")
                e(f"v_mul_f32 v{g}, v{g}, v{u}")
            for j in range(8):
                g = acc + 16 * st
                e(f"v_cvt_pk_bf16_f32 v{vE+32+8*st+j}, v{g+2*j}, v{g+2*j+1}")
            e(f"s_add_u32 s{sT1}, s{sT0}, {st*56*2048}")
            for a in range(2):
                e(f"buffer_store_dwordx4 {vr(vE+32+8*st+4*a,4)}, v{vT}, {srd(S_WS)}, s{sT1} offen offset:{1024*a} sc1")

    def epi_dft():
        e.comment("---- DFT epilogue ----")
        acc = vACC1
        e(f"v_lshrrev_b32 v{vT+1}, 5, v{vLANE}")
        e(f"v_lshlrev_b32 v{vT+2}, 4, v{vT+1}")
        e(f"s_lshl_b32 s{sT0}, s{sWR}, 8")
        e(f"s_add_u32 s{sT0}, s{sT0}, {L_R}")
        e(f"v_add_u32 v{vT+2}, s{sT0}, v{vT+2}")
        for rt in range(2):
            for i in range(4):
                e(f"ds_read_b128 {vr(vE+16*rt+4*i,4)}, v{vT+2} offset:{rt*128 + i*32}")
        e(f"v_and_b32 v{vT}, 31, v{vLANE}")
        e(f"v_lshlrev_b32 v{vT}, 12, v{vT}")
        e(f"v_lshl_add_u32 v{vT}, v{vT+1}, 4, v{vT}")
        e(f"s_lshl_b32 s{sT0}, s{sNT}, 19")
        e(f"s_lshl_b32 s{sT1}, s{sWC}, 17")
        e(f"s_add_u32 s{sT0}, s{sT0}, s{sT1}")
        e(f"s_lshl_b32 s{sT1}, s{sMT}, 8")
        e(f"s_add_u32 s{sT0}, s{sT0}, s{sT1}")
        e(f"s_lshl_b32 s{sT1}, s{sWR}, 7")
        e(f"s_add_u32 s{sT0}, s{sT0}, s{sT1}")
        e(f"s_add_u32 s{sT0}, s{sT0}, {WS_UT}")
        e.wait_lg0()
        for X in range(2):
            e(f"s_add_u32 s{sT1}, s{sT0}, {X*64*4096}")
            for rt in range(2):
                d = acc + 32 * X + 16 * rt
                for j in range(16):
                    e(f"v_mul_f32 v{d+j}, v{d+j}, v{vE+16*rt+j}")
                P = vE + 32 + 8 * rt
                for j in range(8):
                    e(f"v_cvt_pk_bf16_f32 v{P+j}, v{d+2*j}, v{d+2*j+1}")
                for ip in range(2):
                    e(f"v_permlane32_swap_b32 v{P+4*ip}, v{P+4*ip+2}")
                    e(f"v_permlane32_swap_b32 v{P+4*ip+1}, v{P+4*ip+3}")
                    e(f"buffer_store_dwordx4 {vr(P+4*ip,4)}, v{vT}, {srd(S_WS)}, s{sT1} offen offset:{rt*64 + ip*32} sc1")

    e(f"s_cmp_lt_u32 s{sNT}, 4")
    e("s_cbranch_scc1 L_p1_dft")
    p1_main(False)
    load_stats()
    epi_glu(0)
    e("s_branch L_p1_join")
    e.label("L_p1_dft")
    e.vmq = []
    e.lgq = []
    p1_main(True)
    load_stats()
    epi_dft()
    e.label("L_p1_join")
    epi_glu(1)
    e.wait_vm0()
    e("s_barrier")
    e(f"s_lshl_b32 s{sT3}, s{sMT}, 4")
    e(f"s_add_u32 s{sT3}, s{sT3}, s{sNT}")
    set_flag(e, WS_F1, sT3)
    set_flag(e, WS_F2, sT3)

    aC64, aS64, aN64, aC32, aS32, aN32 = 0, 8, 16, 24, 32, 40
    vX = 128
    vU = vX
    vD = vX + 32
    vTW = vX + 48
    vWV = vX + 64
    vP = vX + 72
    vQ = vX + 80
    e(f"v_lshlrev_b32 v{vT}, 4, v{vLANE}")
    e(f"s_add_u32 s{sT0}, s{sLDSW}, {CT_E64}")
    e(f"s_mov_b32 s{sT1}, {CT_E32}")
    for k in range(2):
        e(f"buffer_load_dwordx4 {ar(aC64+4*k,4)}, v{vT}, {srd(S_CT)}, s{sT0} offen offset:{1024*k}")
        e(f"buffer_load_dwordx4 {vr(vQ+4*k,4)}, v{vT}, {srd(S_CT)}, s{sT0} offen offset:{2048+1024*k}")
        e(f"buffer_load_dwordx4 {ar(aC32+4*k,4)}, v{vT}, {srd(S_CT)}, s{sT1} offen offset:{1024*k}")
        e(f"buffer_load_dwordx4 {vr(vQ+8+4*k,4)}, v{vT}, {srd(S_CT)}, s{sT1} offen offset:{2048+1024*k}")
    e(f"v_and_b32 v{vT+1}, 15, v{vLANE}")
    e(f"s_lshl_b32 s{sT0}, s{sW}, 4")
    e(f"v_add_u32 v{vT+1}, s{sT0}, v{vT+1}")
    e(f"v_lshrrev_b32 v{vT+2}, 4, v{vLANE}")
    e(f"v_lshlrev_b32 v{vT+2}, 2, v{vT+2}")
    e(f"v_mov_b32 v{vT+5}, 0x3a000000")
    for mt in range(2):
        for ee in range(4):
            e(f"v_add_u32 v{vT+3}, {16*mt+ee}, v{vT+2}")
            e(f"v_mul_u32_u24 v{vT+3}, v{vT+3}, v{vT+1}")
            e(f"v_cvt_f32_u32 v{vT+3}, v{vT+3}")
            e(f"v_mul_f32 v{vT+3}, v{vT+3}, v{vT+5}")
            e(f"v_cos_f32 v{vTW+4*mt+ee}, v{vT+3}")
            e(f"v_sin_f32 v{vTW+8+4*mt+ee}, v{vT+3}")
    e.wait_vm0()
    for j in range(8):
        e(f"v_accvgpr_write_b32 a{aS64+j}, v{vQ+j}")
        e(f"v_xor_b32 v{vQ+j}, 0x80008000, v{vQ+j}")
        e(f"v_accvgpr_write_b32 a{aN64+j}, v{vQ+j}")
        e(f"v_accvgpr_write_b32 a{aS32+j}, v{vQ+8+j}")
        e(f"v_xor_b32 v{vQ+8+j}, 0x80008000, v{vQ+8+j}")
        e(f"v_accvgpr_write_b32 a{aN32+j}, v{vQ+8+j}")
    e("s_cmp_eq_u32 s2, 255")
    e(f"s_mov_b32 s{sSCALE}, 0x36000000")
    e(f"s_cselect_b32 s{sSCALE}, 0x35800000, s{sSCALE}")
    e(f"v_and_b32 v{vT+1}, 15, v{vLANE}")
    e(f"v_lshlrev_b32 v{vT+1}, 6, v{vT+1}")
    e(f"s_lshr_b32 s{sT0}, s2, 6")
    e(f"s_lshl_b32 s{sT0}, s{sT0}, 2")
    e(f"s_add_u32 s{sT0}, s{sT0}, {WS_F1}")
    e(f"v_add_u32 v{vT+1}, s{sT0}, v{vT+1}")
    e(f"v_and_b32 v{vT+2}, 31, v{vLANE}")
    e(f"v_lshlrev_b32 v{vT+2}, 2, v{vT+2}")
    e(f"s_lshr_b32 s{sT0}, s2, 5")
    e(f"s_lshl_b32 s{sT0}, s{sT0}, 7")
    e(f"s_add_u32 s{sT0}, s{sT0}, {WS_FW}")
    e(f"v_add_u32 v{vT+2}, s{sT0}, v{vT+2}")
    e(f"v_cmp_lt_u32 vcc, 31, v{vLANE}")
    e(f"v_cndmask_b32 v{vT+1}, v{vT+1}, v{vT+2}, vcc")
    poll_flags(e, vT + 1, vT + 3)
    e(f"s_lshl_b32 s{sT0}, s2, 13")
    e(f"s_lshl_b32 s{sT1}, s{sW}, 11")
    e(f"s_add_u32 s{sT2}, s{sT0}, s{sT1}")
    e(f"s_add_u32 s{sT3}, s{sT2}, {WS_UT}")
    e(f"s_add_u32 m0, s{sT1}, {L_U}")
    e(f"buffer_load_dwordx4 v{vT}, {srd(S_WS)}, s{sT3} offen sc1 lds")
    e(f"buffer_load_dwordx4 v{vT}, {srd(S_WS)}, s{sT3} offen offset:1024 sc1 lds")
    e(f"s_add_u32 s{sT3}, s{sT2}, {WS_WT}")
    e(f"buffer_load_dwordx4 {vr(vWV,4)}, v{vT}, {srd(S_WS)}, s{sT3} offen sc1")
    e(f"buffer_load_dwordx4 {vr(vWV+4,4)}, v{vT}, {srd(S_WS)}, s{sT3} offen offset:1024 sc1")
    e.wait_vm0()
    e("s_barrier")
    e(f"v_add_u32 v{vT+1}, {L_U}, v{vT}")
    for f in range(8):
        e(f"ds_read_b128 {vr(vU+4*f,4)}, v{vT+1} offset:{1024*f}")
    e.wait_lg0()
    M16 = "v_mfma_f32_16x16x32_bf16"

    def Uf(p, mt, ks):
        return vr(vU + 16 * p + 8 * mt + 4 * ks, 4)

    def Dt(p, mt):
        return vD + 8 * p + 4 * mt
    for mt in range(2):
        seq = [(0, Uf(0, mt, 0), aC64), (1, Uf(1, mt, 0), aC64), (0, Uf(0, mt, 1), aC64 + 4), (1, Uf(1, mt, 1), aC64 + 4),
               (0, Uf(1, mt, 0), aS64), (1, Uf(0, mt, 0), aN64), (0, Uf(1, mt, 1), aS64 + 4), (1, Uf(0, mt, 1), aN64 + 4)]
        for k, (p, A, B) in enumerate(seq):
            d = vr(Dt(p, mt), 4)
            e(f"{M16} {d}, {A}, {ar(B,4)}, {'0' if k < 2 else d}")

    def cmul_pack(cosr, sinr, conj):
        for j in range(8):
            a = vD + j
            b = vD + 8 + j
            c = cosr + j
            s = sinr + j
            e(f"v_mul_f32 v{vQ+j}, v{a}, v{c}")
            e(f"v_mul_f32 v{vQ+8+j}, v{b}, v{c}")
            if not conj:
                e(f"v_fma_f32 v{vQ+j}, v{b}, v{s}, v{vQ+j}")
                e(f"v_fma_f32 v{vQ+8+j}, -v{a}, v{s}, v{vQ+8+j}")
            else:
                e(f"v_fma_f32 v{vQ+j}, -v{b}, v{s}, v{vQ+j}")
                e(f"v_fma_f32 v{vQ+8+j}, v{a}, v{s}, v{vQ+8+j}")
        for j in range(8):
            e(f"v_cvt_pk_bf16_f32 v{vP+j}, v{vQ+2*j}, v{vQ+2*j+1}")
    cmul_pack(vTW, vTW + 8, False)
    Pr, Pi = vr(vP, 4), vr(vP + 4, 4)

    def stage32(sp, sn):
        for mt in range(2):
            e(f"{M16} {vr(Dt(0,mt),4)}, {ar(aC32+4*mt,4)}, {Pr}, 0")
            e(f"{M16} {vr(Dt(1,mt),4)}, {ar(aC32+4*mt,4)}, {Pi}, 0")
        for mt in range(2):
            e(f"{M16} {vr(Dt(0,mt),4)}, {ar(sp+4*mt,4)}, {Pi}, {vr(Dt(0,mt),4)}")
            e(f"{M16} {vr(Dt(1,mt),4)}, {ar(sn+4*mt,4)}, {Pr}, {vr(Dt(1,mt),4)}")
    stage32(aS32, aN32)
    for j in range(8):
        e(f"v_lshlrev_b32 v{vU+j}, 16, v{vWV+j}")
        e(f"v_and_b32 v{vU+8+j}, 0xffff0000, v{vWV+j}")
        e(f"v_mul_f32 v{vU+j}, s{sSCALE}, v{vU+j}")
        e(f"v_mul_f32 v{vU+8+j}, s{sSCALE}, v{vU+8+j}")
    cmul_pack(vU, vU + 8, True)
    stage32(aN32, aS32)
    cmul_pack(vTW, vTW + 8, True)
    e(f"v_and_b32 v{vT+1}, 15, v{vLANE}")
    e(f"v_lshrrev_b32 v{vT+2}, 3, v{vT+1}")
    e(f"v_lshlrev_b32 v{vT+2}, 5, v{vT+2}")
    e(f"v_lshlrev_b32 v{vT+1}, 6, v{vT+1}")
    e(f"v_add_u32 v{vT+1}, v{vT+1}, v{vT+2}")
    e(f"v_lshrrev_b32 v{vT+2}, 4, v{vLANE}")
    e(f"v_lshl_add_u32 v{vT+1}, v{vT+2}, 3, v{vT+1}")
    e(f"s_lshl_b32 s{sT0}, s{sW}, 10")
    e(f"s_add_u32 s{sT0}, s{sT0}, {L_V}")
    e(f"v_add_u32 v{vT+1}, s{sT0}, v{vT+1}")
    e(f"v_xor_b32 v{vT+2}, 32, v{vT+1}")
    for p in range(2):
        e(f"ds_write_b64 v{vT+1}, {vr(vP+4*p,2)} offset:{4096*p}")
        e(f"ds_write_b64 v{vT+2}, {vr(vP+4*p+2,2)} offset:{4096*p}")
    e(f"v_lshrrev_b32 v{vT+3}, 4, v{vLANE}")
    e(f"v_lshrrev_b32 v{vT+4}, 2, v{vLANE}")
    e(f"v_and_b32 v{vT+4}, 3, v{vT+4}")
    e(f"v_lshl_add_u32 v{vT+4}, v{vT+3}, 3, v{vT+4}")
    e(f"v_lshlrev_b32 v{vT+4}, 6, v{vT+4}")
    e(f"v_and_b32 v{vT+3}, 1, v{vT+3}")
    e(f"v_lshl_add_u32 v{vT+4}, v{vT+3}, 5, v{vT+4}")
    e(f"v_and_b32 v{vT+3}, 3, v{vLANE}")
    e(f"v_lshl_add_u32 v{vT+4}, v{vT+3}, 3, v{vT+4}")
    e(f"v_add_u32 v{vT+4}, {L_V}, v{vT+4}")
    e(f"v_xor_b32 v{vT+5}, 32, v{vT+4}")
    e.wait_lg0()
    e("s_barrier")
    for p in range(2):
        for b in range(2):
            for ks in range(2):
                for rr in range(2):
                    e(f"ds_read_b64_tr_b16 {vr(vU+16*p+8*b+4*ks+2*rr,2)}, v{vT+4+b} offset:{4096*p + (32*ks+4*rr)*64}")
    e.wait_lg0()
    for b in range(2):
        seq = [(0, aC64, Uf(0, b, 0)), (1, aC64, Uf(1, b, 0)), (0, aC64 + 4, Uf(0, b, 1)), (1, aC64 + 4, Uf(1, b, 1)),
               (0, aN64, Uf(1, b, 0)), (1, aS64, Uf(0, b, 0)), (0, aN64 + 4, Uf(1, b, 1)), (1, aS64 + 4, Uf(0, b, 1))]
        for k, (p, A, B) in enumerate(seq):
            d = vr(Dt(p, b), 4)
            e(f"{M16} {d}, {ar(A,4)}, {B}, {'0' if k < 2 else d}")
    e(f"v_lshrrev_b32 v{vT+1}, 4, v{vLANE}")
    e(f"v_and_b32 v{vT+2}, 1, v{vT+1}")
    e(f"v_lshlrev_b32 v{vT+2}, 11, v{vT+2}")
    e(f"v_lshrrev_b32 v{vT+1}, 1, v{vT+1}")
    e(f"v_lshl_add_u32 v{vT+2}, v{vT+1}, 8, v{vT+2}")
    e(f"v_and_b32 v{vT+1}, 15, v{vLANE}")
    e(f"v_lshl_add_u32 v{vT+2}, v{vT+1}, 4, v{vT+2}")
    e(f"s_lshl_b32 s{sT0}, s2, 13")
    e(f"s_lshl_b32 s{sT1}, s{sW}, 9")
    e(f"s_add_u32 s{sT0}, s{sT0}, s{sT1}")
    e(f"s_add_u32 s{sT0}, s{sT0}, {WS_ZT}")
    for j in range(8):
        e(f"v_cvt_pk_bf16_f32 v{vP+j}, v{vD+2*j}, v{vD+2*j+1}")
    for p in range(2):
        e(f"v_permlane16_swap_b32 v{vP+4*p}, v{vP+4*p+2}")
        e(f"v_permlane16_swap_b32 v{vP+4*p+1}, v{vP+4*p+3}")
        e(f"s_add_u32 s{sT1}, s{sT0}, {4096*p}")
        e(f"buffer_store_dwordx4 {vr(vP+4*p,4)}, v{vT+2}, {srd(S_WS)}, s{sT1} offen sc1")
    e.wait_vm0()
    e("s_barrier")
    e(f"s_mov_b32 s{sT3}, s2")
    set_flag(e, WS_FZ, sT3)

    vTRP = 8
    vTRN = 10
    e(f"s_lshl_b32 s{sT4}, s{sW}, 15")
    tr_base(vTRP, None, 0, True, f"s{sT4}")
    tr_base(vTRP + 1, None, 1, True, f"s{sT4}")
    tr_base(vTRN, None, 0, False, f"s{sT4}")
    tr_base(vTRN + 1, None, 1, False, f"s{sT4}")
    e(f"v_and_b32 v{vT+1}, 15, v{vLANE}")
    e(f"v_lshlrev_b32 v{vT+1}, 2, v{vT+1}")
    e(f"v_and_b32 v{vT+2}, 16, v{vLANE}")
    e(f"v_lshl_add_u32 v{vT+1}, v{vT+2}, 6, v{vT+1}")
    e(f"s_lshr_b32 s{sT0}, s{sST}, 1")
    e(f"s_lshl_b32 s{sT0}, s{sT0}, 6")
    e(f"s_add_u32 s{sT0}, s{sT0}, {WS_F1}")
    e(f"v_add_u32 v{vT+1}, s{sT0}, v{vT+1}")
    poll_flags(e, vT + 1, vT + 3)
    e(f"v_lshlrev_b32 v{vT+1}, 2, v0")
    e(f"v_add_u32 v{vT+1}, {WS_FZ}, v{vT+1}")
    poll_flags(e, vT + 1, vT + 3)
    e(f"v_lshlrev_b32 v{vT}, 4, v{vLANE}")
    sHB, sWDB, sZB, sGB, sU6 = sU1, sU2, sBOFF1, sBOFF2, sAOFF
    e(f"s_mul_i32 s{sU6}, s{sW}, 6")
    e(f"s_mul_i32 s{sHB}, s{sST}, {2*56*2048}")
    e(f"s_add_u32 s{sHB}, s{sHB}, {WS_H}")
    e(f"s_lshl_b32 s{sWDB}, s{sDT}, 7")
    e(f"s_lshl_b32 s{sZB}, s{sW}, 19")
    e(f"s_lshl_b32 s{sT0}, s{sST}, 7")
    e(f"s_add_u32 s{sZB}, s{sZB}, s{sT0}")
    e(f"s_add_u32 s{sZB}, s{sZB}, {WS_ZT}")
    e(f"s_lshl_b32 s{sGB}, s{sDT}, 16")
    e(f"s_lshl_b32 s{sT0}, s{sW}, 14")
    e(f"s_add_u32 s{sGB}, s{sGB}, s{sT0}")
    e(f"s_add_u32 s{sGB}, s{sGB}, {CT_G}")
    acc = vACC1

    def p3_issue(c):
        lds = (c & 3) * 8192
        fr = 64 + 32 * (c & 3)
        if c < 7:
            uoff = [0, 2, 4, 1, 3, 5][c] if c < 6 else None
            if uoff is None:
                e(f"s_add_u32 s{sT1}, s{sW}, 24")
            else:
                e(f"s_add_u32 s{sT1}, s{sU6}, {uoff}")
            e(f"s_lshl_b32 s{sT2}, s{sT1}, 16")
            e(f"s_add_u32 s{sT2}, s{sT2}, s{sWDB}")
            for i in range(8):
                e(f"s_add_u32 m0, s{sT4}, {lds + i*1024}")
                e(f"s_add_u32 s{sT0}, s{sT2}, {i*8192}")
                e(f"buffer_load_dwordx4 v{vBDMAF}, {srd(S_WD)}, s{sT0} offen lds", tag=("C", c))
            e(f"s_lshl_b32 s{sT2}, s{sT1}, 12")
            e(f"s_add_u32 s{sT2}, s{sT2}, s{sHB}")
            for st in range(2):
                e(f"s_add_u32 s{sT0}, s{sT2}, {st*56*2048}")
                for ks in range(4):
                    e(f"buffer_load_dwordx4 {ar(fr+16*st+4*ks,4)}, v{vT}, {srd(S_WS)}, s{sT0} offen offset:{1024*ks} sc1", tag=("C", c))
        else:
            z = c - 7
            for i in range(8):
                e(f"s_add_u32 m0, s{sT4}, {lds + i*1024}")
                e(f"s_add_u32 s{sT0}, s{sZB}, {(64*z + 8*i)*4096}")
                e(f"buffer_load_dwordx4 v{vBDMAZ}, {srd(S_WS)}, s{sT0} offen sc1 lds", tag=("C", c))
            for ks in range(4):
                e(f"s_add_u32 s{sT0}, s{sGB}, {(4*z+ks)*2048}")
                for m2 in range(2):
                    e(f"buffer_load_dwordx4 {ar(fr+16*m2+4*ks,4)}, v{vT}, {srd(S_CT)}, s{sT0} offen offset:{1024*m2}", tag=("C", c))

    for c in range(3):
        p3_issue(c)
    for c in range(9):
        lds = (c & 3) * 8192
        fr = 64 + 32 * (c & 3)
        e.wait_vm(("C", c))
        if c + 3 < 9:
            p3_issue(c + 3)
        for ks in range(4):
            buf = vBF + 8 * (ks & 1)
            for ct in range(2):
                for rr in range(2):
                    if c < 7:
                        e(f"ds_read_b64_tr_b16 {vr(buf+4*ct+2*rr,2)}, v{vTRP+ct} offset:{lds + (16*ks+8*rr)*128}")
                    else:
                        e(f"ds_read_b64_tr_b16 {vr(buf+4*ct+2*rr,2)}, v{vTRN+ct} offset:{lds + (16*ks+4*rr)*128}")
            e.wait_lg0()
            for m2 in range(2):
                for st in range(2):
                    d = vr(acc + 32 * m2 + 16 * st, 16)
                    cc = "0" if (c == 0 and ks == 0) else d
                    if c < 7:
                        e(f"v_mfma_f32_32x32x16_bf16 {d}, {vr(buf+4*m2,4)}, {ar(fr+16*st+4*ks,4)}, {cc}")
                    else:
                        e(f"v_mfma_f32_32x32x16_bf16 {d}, {ar(fr+16*m2+4*ks,4)}, {vr(buf+4*st,4)}, {cc}")
    e("s_barrier")
    e(f"v_and_b32 v{vT+1}, 31, v{vLANE}")
    e(f"v_lshrrev_b32 v{vT+2}, 5, v{vLANE}")
    e(f"v_and_b32 v{vT+3}, 15, v{vLANE}")
    e(f"v_xor_b32 v{vT+3}, v{vT+3}, v{vT+2}")
    e(f"v_lshlrev_b32 v{vT+1}, 8, v{vT+1}")
    e(f"s_lshl_b32 s{sT0}, s{sW}, 14")
    e(f"v_add_u32 v{vT+1}, s{sT0}, v{vT+1}")
    for m2 in range(2):
        for i in range(4):
            e(f"v_xor_b32 v{vT+4}, {8*m2+2*i}, v{vT+3}")
            e(f"v_lshl_add_u32 v{vT+4}, v{vT+4}, 4, v{vT+1}")
            for st in range(2):
                e(f"ds_write_b128 v{vT+4}, {vr(acc+32*m2+16*st+4*i,4)} offset:{8192*st}")
    e(f"s_lshr_b32 s{sT0}, s{sST}, 1")
    e(f"s_and_b32 s{sT1}, s{sT0}, 7")
    e(f"s_lshl_b32 s{sT1}, s{sT1}, 8")
    e(f"s_lshr_b32 s{sT0}, s{sT0}, 3")
    e(f"s_lshl_b32 s{sT0}, s{sT0}, 4")
    e(f"s_add_u32 s{sT1}, s{sT1}, s{sT0}")
    e(f"s_and_b32 s{sT0}, s{sST}, 1")
    e(f"s_lshl_b32 s{sT0}, s{sT0}, 3")
    e(f"s_add_u32 s{sT1}, s{sT1}, s{sT0}")
    e(f"s_lshl_b32 s{sT0}, s{sW}, 1")
    e(f"s_add_u32 s{sT1}, s{sT1}, s{sT0}")
    e(f"s_lshl_b32 s{sT1}, s{sT1}, 10")
    e(f"s_add_u32 s{sT1}, s{sT1}, s{sWDB}")
    e(f"v_lshrrev_b32 v{vT+5}, 3, v{vLANE}")
    e(f"v_and_b32 v{vT+6}, 7, v{vLANE}")
    e(f"v_lshlrev_b32 v{vT+7}, 15, v{vT+5}")
    e(f"v_lshl_add_u32 v{vT+7}, v{vT+6}, 4, v{vT+7}")
    for it in range(2):
        e(f"buffer_load_dwordx4 {vr(vE+4*it,4)}, v{vT+7}, {srd(S_X)}, s{sT1} offen offset:{1024*it}")
    e.wait_lg0()
    e("s_barrier")
    e(f"s_lshl_b32 s{sT0}, s{sW}, 12")
    e(f"v_lshlrev_b32 v{vT+8}, 8, v{vT+5}")
    e(f"v_add_u32 v{vT+8}, s{sT0}, v{vT+8}")
    e(f"v_lshlrev_b32 v{vT+9}, 1, v{vT+6}")
    e(f"v_xor_b32 v{vT+9}, v{vT+9}, v{vT+5}")
    R0 = 128
    for it in range(2):
        for hh in range(2):
            e(f"v_xor_b32 v{vT+10}, {8*it ^ hh}, v{vT+9}")
            e(f"v_lshl_add_u32 v{vT+10}, v{vT+10}, 4, v{vT+8}")
            for pw in range(4):
                e(f"ds_read_b128 {vr(R0+32*it+16*hh+4*pw,4)}, v{vT+10} offset:{16384*pw + 2048*it}")
    e.wait_lg0()
    e.wait_vm0()
    for it in range(2):
        for hh in range(2):
            b = R0 + 32 * it + 16 * hh
            for j in range(4):
                e(f"v_add_f32 v{b+j}, v{b+j}, v{b+4+j}")
                e(f"v_add_f32 v{b+8+j}, v{b+8+j}, v{b+12+j}")
                e(f"v_add_f32 v{b+j}, v{b+j}, v{b+8+j}")
            for d in range(2):
                xr = vE + 4 * it + 2 * hh + d
                e(f"v_lshlrev_b32 v{vT+10}, 16, v{xr}")
                e(f"v_and_b32 v{vT+11}, 0xffff0000, v{xr}")
                e(f"v_add_f32 v{b+2*d}, v{b+2*d}, v{vT+10}")
                e(f"v_add_f32 v{b+2*d+1}, v{b+2*d+1}, v{vT+11}")
                e(f"v_cvt_pk_bf16_f32 v{vE+8+4*it+2*hh+d}, v{b+2*d}, v{b+2*d+1}")
        e(f"buffer_store_dwordx4 {vr(vE+8+4*it,4)}, v{vT+7}, {srd(S_OUT)}, s{sT1} offen offset:{1024*it}")
    e("s_cmp_lg_u32 s2, 0")
    e("s_cbranch_scc1 L_end")
    e(f"s_mov_b32 s{sT3}, 0")
    set_flag(e, WS_GEN, sT3)
    e.raw("L_end:")
    e.raw("    s_endpgm")

    e.raw('.section .rodata,"a"')
    e.raw(".p2align 6")
    e.raw(f".amdhsa_kernel {KN}")
    e.raw("  .amdhsa_next_free_vgpr 512")
    e.raw("  .amdhsa_next_free_sgpr 96")
    e.raw("  .amdhsa_accum_offset 256")
    e.raw("  .amdhsa_group_segment_fixed_size 0")
    e.raw("  .amdhsa_kernarg_size 80")
    e.raw("  .amdhsa_user_sgpr_count 2")
    e.raw("  .amdhsa_user_sgpr_kernarg_segment_ptr 1")
    e.raw("  .amdhsa_system_sgpr_workgroup_id_x 1")
    e.raw(".end_amdhsa_kernel")
    main = e.text()
    e = Emit()
    e.raw(".p2align 12")
    e.raw(".type CTAB,@object")
    e.raw("CTAB:")
    for i in range(512):
        e.raw(f".set P{i}, {int(T[i]) | (int(T[(i+128) & 511]) << 16):#x}")
    e.raw(".altmacro")
    e.raw(".macro ent4 a, b, c, d")
    e.raw(".long P\\a, P\\b, P\\c, P\\d")
    e.raw(".endm")
    e.raw(".set dd, 0")
    e.raw(".rept 512")
    e.raw(".set cc, 1")
    e.raw(".rept 64")
    e.raw("ent4 %((dd*cc)&511), %((dd*(cc+1))&511), %((dd*(cc+2))&511), %((dd*(cc+3))&511)")
    e.raw(".set cc, cc+4")
    e.raw(".endr")
    e.raw(".set dd, dd+1")
    e.raw(".endr")
    e.raw(".set ii, 0")
    e.raw(".rept 32768")
    e.raw(".set dd, ((ii>>12)<<6) + (((ii>>6)&1)<<5) + (ii&31)")
    e.raw(".set cc, (((ii>>7)&31)<<3) + (((ii>>5)&1)<<2) + 1")
    e.raw("ent4 %((dd*cc)&511), %((dd*(cc+1))&511), %((dd*(cc+2))&511), %((dd*(cc+3))&511)")
    e.raw(".set ii, ii+1")
    e.raw(".endr")
    e.raw(".noaltmacro")
    lane = np.arange(64)
    n = lane & 15
    q = lane >> 4

    def emit_img(idx):
        v = T[idx & 511]
        w32 = v[:, 0::2] | (v[:, 1::2] << 16)
        for l in range(64):
            e.raw(".long " + ", ".join(f"{int(x):#x}" for x in w32[l]))
    ee = np.arange(8)
    for w in range(4):
        for sh in (0, -128):
            for ks in range(2):
                n1 = 32 * ks + 8 * q[:, None] + ee[None, :]
                k1 = (16 * w + n)[:, None]
                emit_img(8 * n1 * k1 + sh)
    for sh in (0, -128):
        for mt in range(2):
            row = (16 * mt + n)[:, None]
            idx = 16 * (ee[None, :] >> 2) + 4 * q[:, None] + (ee[None, :] & 3)
            emit_img(16 * row * idx + sh)
    return main.replace("@@TABLE@@", e.text())


if __name__ == "__main__":
    out = sys.argv[1] if len(sys.argv) > 1 else "k1.s"
    open(out, "w").write(gen())
    print("wrote", out)
```
